```python
import torch

def _softmax(x, axis=-1):
    return torch.softmax(x, dim=axis)
def _gelu(x):
    return torch.nn.functional.gelu(x, approximate="tanh")
def _silu(x):
    return torch.nn.functional.silu(x)
def _sigmoid(x):
    return torch.sigmoid(x)
def _layernorm(x, axis=-1, eps=1e-5):
    m = x.mean(dim=axis, keepdim=True)
    v = x.var(dim=axis, keepdim=True, unbiased=False)
    return (x - m) / torch.sqrt(v + eps)
def _scatter_add(tgt, idx, src, axis=0):
    return tgt.clone().index_add_(axis, idx, src)
def _segment_sum(src, seg, n):
    out = torch.zeros((n,) + src.shape[1:], dtype=src.dtype)
    return out.index_add_(0, seg, src)
def _pad(x, pw):
    flat = tuple(v for pair in reversed(pw) for v in pair)
    return torch.nn.functional.pad(x, flat)

kernel_name = 'standalone__gqa_softmax__sampling'

def setup_inputs():

    _w = (lambda a: (lambda t: t.to(torch.bfloat16) if t.is_floating_point() else t)(torch.as_tensor(a)))
    B, Hq, Hkv, Sq, Sk, D = 8, 32, 8, 1, 4096, 128
    return {
        "q": _w((lambda *s: torch.randn(*s, dtype=torch.bfloat16) * 0.8)(B, Hq, Sq, D)),
        "k": _w((lambda *s: torch.randn(*s, dtype=torch.bfloat16) * 0.8)(B, Hkv, Sk, D)),
        "v": _w((lambda *s: torch.randn(*s, dtype=torch.bfloat16) * 0.05)(B, Hkv, Sk, D)),
    }

def reference(q, k, v):
    B, Hq, Sq, D = q.shape
    Hkv = k.shape[1]
    rep = Hq // Hkv
    k = (lambda x, n, axis: torch.repeat_interleave(x, n, dim=axis))(k, rep, axis=1)
    v = (lambda x, n, axis: torch.repeat_interleave(x, n, dim=axis))(v, rep, axis=1)
    scale = D ** -0.5
    scores = torch.einsum("bhqd,bhkd->bhqk", q, k) * scale
    p = _softmax(scores, axis=-1)
    return torch.einsum("bhqk,bhkd->bhqd", p, v)
```

```python
import sys, re
src, dst, nw = sys.argv[1], sys.argv[2], int(sys.argv[3]) if len(sys.argv) > 3 else 8
nwg = int(sys.argv[4]) if len(sys.argv) > 4 else 256
s = open(src).read()
m = re.search(r"; @launch (grid=\S+ block=\S+ lds=\d+)", s)
k = "; @launch kernel=standalone__gqa_softmax__sampling_kernel " + m.group(1)
e = "; @launch kernel=stat_kernel grid=(1,1,1) block=(256,1,1) lds=256"
o = []
E = o.append
E(""".text
.globl stat_kernel
.p2align 8
.type stat_kernel,@function
stat_kernel:
    s_cmp_ge_u32 s2, 1
    s_cbranch_scc1 S_end
    s_load_dwordx2 s[4:5], s[0:1], 40
    s_load_dwordx2 s[8:9], s[0:1], 32
    s_memrealtime s[12:13]
    s_mov_b32 s6, 0x10000000
    s_mov_b32 s7, 0x20000
    s_mov_b32 s10, 256
    s_mov_b32 s11, 0x20000
    v_and_b32 v1, 31, v0
    v_lshlrev_b32 v1, 2, v1
    v_and_b32 v2, 16, v0
    v_cmp_eq_u32 vcc, 0, v2
    s_nop 1
    v_cndmask_b32 v2, 0, -1, vcc
    ds_write_b32 v1, v2
    v_mov_b32 v3, 0
    s_waitcnt lgkmcnt(0)
    s_barrier""")
recs = nwg * nw // 256
E(f"    v_mul_u32_u24 v4, {recs*64}, v0")
E(f"    v_add_u32 v4, 0x1000000, v4")
for w in range(recs):
    E(f"    buffer_load_dwordx4 v[8:11], v4, s[4:7], 0 offen offset:{w*64}")
    E(f"    buffer_load_dwordx4 v[12:15], v4, s[4:7], 0 offen offset:{w*64+16}")
    E(f"    buffer_load_dwordx4 v[16:19], v4, s[4:7], 0 offen offset:{w*64+32}")
    E("    s_waitcnt vmcnt(0)")
    for i in range(10):
        if i == 8 or (i == 7 and w % nw): continue
        E(f"    ds_min_u32 v3, v{8+i} offset:{4*i}")
        E(f"    ds_max_u32 v3, v{8+i} offset:{64+4*i}")
    E("    s_waitcnt lgkmcnt(0)")
E("""    v_mov_b32 v5, s12
    ds_write_b32 v3, v5 offset:104
    s_waitcnt lgkmcnt(0)
    s_barrier""")
sel = [1, 2, 4, 6, 9, 16, 17, 18, 19, 20, 21, 22, 23, 25, 26, 3]
E("    ds_read_b32 v6, v3")
for i, x in enumerate(sel):
    E(f"    ds_read_b32 v{8+i}, v3 offset:{4*x}")
    if i % 8 == 7: E("    s_waitcnt lgkmcnt(0)")
for i in range(16):
    E(f"    v_sub_u32 v{8+i}, v{8+i}, v6")
E("    v_cmp_eq_u32 vcc, 0, v0")
E("    s_and_saveexec_b64 s[14:15], vcc")
E("    s_cbranch_execz S_end")
for i in range(4):
    E(f"    buffer_store_dwordx4 v[{8+4*i}:{11+4*i}], v3, s[8:11], 0 offen offset:{16*i}")
E("""S_end:
    s_endpgm
.section .rodata,"a"
.p2align 6
.amdhsa_kernel stat_kernel
  .amdhsa_next_free_vgpr 32
  .amdhsa_next_free_sgpr 32
  .amdhsa_accum_offset 32
  .amdhsa_group_segment_fixed_size 0
  .amdhsa_kernarg_size 48
  .amdhsa_user_sgpr_count 2
  .amdhsa_user_sgpr_kernarg_segment_ptr 1
  .amdhsa_system_sgpr_workgroup_id_x 1
.end_amdhsa_kernel
""")
open(dst, "w").write(s.replace(m.group(0), k + "\n" + e) + "\n".join(o))
print("debug = min[karg issued kdone vdone done] max[start karg issued k0 kdone smax vdone red done] statstart min[k0]  (10 ns ticks)")
```

```python
import sys, re
src, dst, nw = sys.argv[1], sys.argv[2], int(sys.argv[3]) if len(sys.argv) > 3 else 8
nwg = int(sys.argv[4]) if len(sys.argv) > 4 else 256
s = open(src).read()
m = re.search(r"; @launch (grid=\S+ block=\S+ lds=\d+)", s)
k = "; @launch kernel=standalone__gqa_softmax__sampling_kernel " + m.group(1)
e = "; @launch kernel=stat_kernel grid=(1,1,1) block=(256,1,1) lds=256"
o = []
E = o.append
E(""".text
.globl stat_kernel
.p2align 8
.type stat_kernel,@function
stat_kernel:
    s_cmp_ge_u32 s2, 1
    s_cbranch_scc1 S_end
    s_load_dwordx2 s[4:5], s[0:1], 40
    s_load_dwordx2 s[8:9], s[0:1], 32
    s_memrealtime s[12:13]
    s_mov_b32 s6, 0x10000000
    s_mov_b32 s7, 0x20000
    s_mov_b32 s10, 256
    s_mov_b32 s11, 0x20000
    v_and_b32 v1, 31, v0
    v_lshlrev_b32 v1, 2, v1
    v_and_b32 v2, 16, v0
    v_cmp_eq_u32 vcc, 0, v2
    s_nop 1
    v_cndmask_b32 v2, 0, -1, vcc
    ds_write_b32 v1, v2
    v_mov_b32 v3, 0
    s_waitcnt lgkmcnt(0)
    s_barrier""")
recs = nwg * nw // 256
E(f"    v_mul_u32_u24 v4, {recs*64}, v0")
E(f"    v_add_u32 v4, 0x1000000, v4")
for w in range(recs):
    E(f"    buffer_load_dwordx4 v[8:11], v4, s[4:7], 0 offen offset:{w*64}")
    E(f"    buffer_load_dwordx4 v[12:15], v4, s[4:7], 0 offen offset:{w*64+16}")
    E(f"    buffer_load_dwordx4 v[16:19], v4, s[4:7], 0 offen offset:{w*64+32}")
    E("    s_waitcnt vmcnt(0)")
    for i in range(10):
        if i == 8 or (i == 7 and w % nw): continue
        E(f"    ds_min_u32 v3, v{8+i} offset:{4*i}")
        E(f"    ds_max_u32 v3, v{8+i} offset:{64+4*i}")
    E("    s_waitcnt lgkmcnt(0)")
E("""    v_mov_b32 v5, s12
    ds_write_b32 v3, v5 offset:104
    s_waitcnt lgkmcnt(0)
    s_barrier""")
sel = [1, 2, 4, 6, 9, 16, 17, 18, 19, 20, 21, 22, 23, 25, 26, 3]
E("    ds_read_b32 v6, v3")
for i, x in enumerate(sel):
    E(f"    ds_read_b32 v{8+i}, v3 offset:{4*x}")
    if i % 8 == 7: E("    s_waitcnt lgkmcnt(0)")
for i in range(16):
    E(f"    v_sub_u32 v{8+i}, v{8+i}, v6")
spin = sys.argv[5] if len(sys.argv) > 5 else None
if spin is not None:
    E("    v_readfirstlane_b32 s16, v6")
    if int(spin) >= 0:
        E(f"    v_readfirstlane_b32 s17, v{8+int(spin)}")
    else:
        E("    s_mov_b32 s17, 0")
    E("""    s_nop 3
    s_min_u32 s17, s17, 20000
    s_add_u32 s17, s17, 10000
    s_mov_b32 s20, 0
S_spin:
    s_memrealtime s[18:19]
    s_add_u32 s20, s20, 1
    s_cmp_gt_u32 s20, 100000
    s_cbranch_scc1 S_out
    s_waitcnt lgkmcnt(0)
    s_sub_u32 s18, s18, s16
    s_cmp_lt_u32 s18, s17
    s_cbranch_scc1 S_spin
S_out:
    s_waitcnt lgkmcnt(0)""")
E("    v_cmp_eq_u32 vcc, 0, v0")
E("    s_and_saveexec_b64 s[14:15], vcc")
E("    s_cbranch_execz S_end")
for i in range(4):
    E(f"    buffer_store_dwordx4 v[{8+4*i}:{11+4*i}], v3, s[8:11], 0 offen offset:{16*i}")
E("""S_end:
    s_endpgm
.section .rodata,"a"
.p2align 6
.amdhsa_kernel stat_kernel
  .amdhsa_next_free_vgpr 32
  .amdhsa_next_free_sgpr 32
  .amdhsa_accum_offset 32
  .amdhsa_group_segment_fixed_size 0
  .amdhsa_kernarg_size 48
  .amdhsa_user_sgpr_count 2
  .amdhsa_user_sgpr_kernarg_segment_ptr 1
  .amdhsa_system_sgpr_workgroup_id_x 1
.end_amdhsa_kernel
""")
open(dst, "w").write(s.replace(m.group(0), k + "\n" + e) + "\n".join(o))
print("debug = min[karg issued kdone vdone done] max[start karg issued k0 kdone smax vdone red done] statstart min[k0]  (10 ns ticks)")
```

```python
import sys, re
src, dst, nrec, op, col = sys.argv[1], sys.argv[2], int(sys.argv[3]), sys.argv[4], int(sys.argv[5])
xcc = int(sys.argv[6]) if len(sys.argv) > 6 else -1
s = open(src).read()
m = re.search(r"; @launch (grid=\S+ block=\S+ lds=\d+)", s)
k = "; @launch kernel=standalone__gqa_softmax__sampling_kernel " + m.group(1)
e = "; @launch kernel=stat_kernel grid=(1,1,1) block=(256,1,1) lds=256"
o = []
E = o.append
recs = nrec // 256
E(f""".text
.globl stat_kernel
.p2align 8
.type stat_kernel,@function
stat_kernel:
    s_cmp_ge_u32 s2, 1
    s_cbranch_scc1 S_end
    s_load_dwordx2 s[4:5], s[0:1], 40
    s_load_dwordx2 s[8:9], s[0:1], 32
    s_mov_b32 s6, 0x10000000
    s_mov_b32 s7, 0x20000
    s_mov_b32 s10, 256
    s_mov_b32 s11, 0x20000
    v_mov_b32 v3, 0
    v_mov_b32 v20, -1
    v_mov_b32 v21, -1
    v_mov_b32 v22, 0
    v_mov_b32 v23, 0
    ds_write_b128 v3, v[20:23]
    ds_write_b32 v3, v22 offset:16
    v_mul_u32_u24 v4, {recs*64}, v0
    v_add_u32 v4, 0x1000000, v4
    s_waitcnt lgkmcnt(0)
    s_barrier""")
for w in range(recs):
    E(f"    buffer_load_dword v{32+w}, v4, s[4:7], 0 offen offset:{w*64}")
    E(f"    buffer_load_dword v{64+w}, v4, s[4:7], 0 offen offset:{w*64+4*col}")
    E(f"    buffer_load_dword v{96+w}, v4, s[4:7], 0 offen offset:{w*64+60}")
E("    s_waitcnt vmcnt(0)")
for w in range(recs):
    E(f"    v_min_u32 v20, v20, v{32+w}")
E("    ds_min_u32 v3, v20\n    s_waitcnt lgkmcnt(0)\n    s_barrier\n    ds_read_b32 v6, v3\n    s_waitcnt lgkmcnt(0)")
E("    v_mov_b32 v24, 0")
for w in range(recs):
    E(f"    v_sub_u32 v5, v{64+w}, v6")
    E(f"    v_and_b32 v7, 15, v{96+w}")
    if xcc == -2:
        E(f"    v_cmp_gt_u32 vcc, 10000, v5")
    elif xcc >= 0:
        E(f"    v_cmp_eq_u32 vcc, {xcc}, v7")
    else:
        E(f"    v_cmp_eq_u32 vcc, v7, v7")
    E("    s_and_saveexec_b64 s[14:15], vcc")
    E("    v_min_u32 v21, v21, v5\n    v_max_u32 v22, v22, v5\n    v_add_u32 v23, v23, v5\n    v_add_u32 v24, 1, v24")
    E("    s_mov_b64 exec, s[14:15]")
E("""    ds_min_u32 v3, v21 offset:4
    ds_max_u32 v3, v22 offset:8
    ds_add_u32 v3, v23 offset:12
    ds_add_u32 v3, v24 offset:16
    s_waitcnt lgkmcnt(0)
    s_barrier
    ds_read_b128 v[8:11], v3
    ds_read_b32 v12, v3 offset:16
    s_waitcnt lgkmcnt(0)
    v_cvt_f32_u32 v13, v11
    v_cvt_f32_u32 v14, v12
    v_rcp_f32 v14, v14
    s_nop 1
    v_mul_f32 v13, v13, v14
    v_cvt_u32_f32 v11, v13
    s_nop 1
    v_readfirstlane_b32 s16, v6""")
if op == "none": E("    s_mov_b32 s17, 0")
else: E(f"    v_readfirstlane_b32 s17, v{ {'min':9,'max':10,'mean':11}[op] }")
E("""    s_nop 3
    s_min_u32 s17, s17, 20000
    s_add_u32 s17, s17, 10000
    s_mov_b32 s20, 0
S_spin:
    s_memrealtime s[18:19]
    s_add_u32 s20, s20, 1
    s_cmp_gt_u32 s20, 100000
    s_cbranch_scc1 S_out
    s_waitcnt lgkmcnt(0)
    s_sub_u32 s18, s18, s16
    s_cmp_lt_u32 s18, s17
    s_cbranch_scc1 S_spin
S_out:
    s_waitcnt lgkmcnt(0)
    v_cmp_eq_u32 vcc, 0, v0
    s_and_saveexec_b64 s[14:15], vcc
    s_cbranch_execz S_end
    buffer_store_dwordx4 v[8:11], v3, s[8:11], 0 offen
S_end:
    s_endpgm
.section .rodata,"a"
.p2align 6
.amdhsa_kernel stat_kernel
  .amdhsa_next_free_vgpr 128
  .amdhsa_next_free_sgpr 32
  .amdhsa_accum_offset 128
  .amdhsa_group_segment_fixed_size 0
  .amdhsa_kernarg_size 48
  .amdhsa_user_sgpr_count 2
  .amdhsa_user_sgpr_kernarg_segment_ptr 1
  .amdhsa_system_sgpr_workgroup_id_x 1
.end_amdhsa_kernel
""")
open(dst, "w").write(s.replace(m.group(0), k + "\n" + e) + "\n".join(o))
```

```python
import sys, re
src, dst, nrec, op, col = sys.argv[1], sys.argv[2], int(sys.argv[3]), sys.argv[4], int(sys.argv[5])
xcc = int(sys.argv[6]) if len(sys.argv) > 6 else -1
s = open(src).read()
m = re.search(r"; @launch (grid=\S+ block=\S+ lds=\d+)", s)
k = "; @launch kernel=standalone__gqa_softmax__sampling_kernel " + m.group(1)
e = "; @launch kernel=stat_kernel grid=(1,1,1) block=(256,1,1) lds=256"
o = []
E = o.append
recs = nrec // 256
E(f""".text
.globl stat_kernel
.p2align 8
.type stat_kernel,@function
stat_kernel:
    s_cmp_ge_u32 s2, 1
    s_cbranch_scc1 S_end
    s_load_dwordx2 s[4:5], s[0:1], 40
    s_load_dwordx2 s[8:9], s[0:1], 32
    s_mov_b32 s6, 0x10000000
    s_mov_b32 s7, 0x20000
    s_mov_b32 s10, 256
    s_mov_b32 s11, 0x20000
    v_mov_b32 v3, 0
    v_mov_b32 v20, -1
    v_mov_b32 v21, -1
    v_mov_b32 v22, 0
    v_mov_b32 v23, 0
    ds_write_b128 v3, v[20:23]
    ds_write_b32 v3, v22 offset:16
    v_mul_u32_u24 v4, {recs*64}, v0
    v_add_u32 v4, 0x1000000, v4
    s_waitcnt lgkmcnt(0)
    s_barrier""")
for w in range(recs):
    E(f"    buffer_load_dword v{32+w}, v4, s[4:7], 0 offen offset:{w*64}")
    E(f"    buffer_load_dword v{64+w}, v4, s[4:7], 0 offen offset:{w*64+4*col}")
    E(f"    buffer_load_dword v{96+w}, v4, s[4:7], 0 offen offset:{w*64+60}")
E("    s_waitcnt vmcnt(0)")
for w in range(recs):
    E(f"    v_min_u32 v20, v20, v{32+w}")
E("    ds_min_u32 v3, v20\n    s_waitcnt lgkmcnt(0)\n    s_barrier\n    ds_read_b32 v6, v3\n    s_waitcnt lgkmcnt(0)")
E("    v_mov_b32 v24, 0")
for w in range(recs):
    E(f"    v_sub_u32 v5, v{64+w}, v6")
    E(f"    v_and_b32 v7, 15, v{96+w}")
    if xcc == -2:
        E(f"    v_cmp_gt_u32 vcc, 10000, v5")
    elif xcc >= 0:
        E(f"    v_cmp_eq_u32 vcc, {xcc}, v7")
    else:
        E(f"    v_cmp_eq_u32 vcc, v7, v7")
    E("    s_and_saveexec_b64 s[14:15], vcc")
    E("    v_min_u32 v21, v21, v5\n    v_max_u32 v22, v22, v5\n    v_add_u32 v23, v23, v5\n    v_add_u32 v24, 1, v24")
    E("    s_mov_b64 exec, s[14:15]")
E("""    ds_min_u32 v3, v21 offset:4
    ds_max_u32 v3, v22 offset:8
    ds_add_u32 v3, v23 offset:12
    ds_add_u32 v3, v24 offset:16
    s_waitcnt lgkmcnt(0)
    s_barrier
    ds_read_b128 v[8:11], v3
    ds_read_b32 v12, v3 offset:16
    s_waitcnt lgkmcnt(0)
    v_cvt_f32_u32 v13, v11
    v_cvt_f32_u32 v14, v12
    v_rcp_f32 v14, v14
    s_nop 1
    v_mul_f32 v13, v13, v14
    v_cvt_u32_f32 v11, v13
    s_nop 1
    v_readfirstlane_b32 s16, v6""")
if op == "none": E("    s_mov_b32 s17, 0")
else: E(f"    v_readfirstlane_b32 s17, v{ {'min':9,'max':10,'mean':11}[op] }")
E("""    s_nop 3
    s_min_u32 s17, s17, 20000
    s_add_u32 s17, s17, 10000
    s_mov_b32 s20, 0
S_spin:
    s_memrealtime s[18:19]
    s_add_u32 s20, s20, 1
    s_cmp_gt_u32 s20, 100000
    s_cbranch_scc1 S_out
    s_waitcnt lgkmcnt(0)
    s_sub_u32 s18, s18, s16
    s_cmp_lt_u32 s18, s17
    s_cbranch_scc1 S_spin
S_out:
    s_waitcnt lgkmcnt(0)
    v_cmp_eq_u32 vcc, 0, v0
    s_and_saveexec_b64 s[14:15], vcc
    s_cbranch_execz S_end
    buffer_store_dwordx4 v[8:11], v3, s[8:11], 0 offen
S_end:
    s_endpgm
.section .rodata,"a"
.p2align 6
.amdhsa_kernel stat_kernel
  .amdhsa_next_free_vgpr 128
  .amdhsa_next_free_sgpr 32
  .amdhsa_accum_offset 128
  .amdhsa_group_segment_fixed_size 0
  .amdhsa_kernarg_size 48
  .amdhsa_user_sgpr_count 2
  .amdhsa_user_sgpr_kernarg_segment_ptr 1
  .amdhsa_system_sgpr_workgroup_id_x 1
.end_amdhsa_kernel
""")
import os
tiny = os.environ.get("TINY")
body = "\n".join(o)
if tiny:
    g, b, vg, lds = tiny.split(",")
    k = f"; @launch kernel=tiny_kernel grid=({g},1,1) block=({b},1,1) lds={lds}\n" + k
    body = body.replace("    v_readfirstlane_b32 s16, v6", "    s_load_dword s16, s[4:5], 0xfffc0\n    s_waitcnt lgkmcnt(0)")
    body += f""".text
.globl tiny_kernel
.p2align 8
.type tiny_kernel,@function
tiny_kernel:
    s_memrealtime s[12:13]
    s_cmp_ge_u32 s2, 1
    s_cbranch_scc1 Y_end
    s_load_dwordx2 s[4:5], s[0:1], 40
    s_mov_b32 s6, 0x10000000
    s_mov_b32 s7, 0x20000
    s_mov_b32 s3, 0xfffc0
    s_waitcnt lgkmcnt(0)
    v_mov_b32 v1, s12
    v_cmp_eq_u32 vcc, 0, v0
    s_and_saveexec_b64 s[14:15], vcc
    s_cbranch_execz Y_end
    buffer_store_dword v1, off, s[4:7], s3
Y_end:
    s_endpgm
.section .rodata,"a"
.p2align 6
.amdhsa_kernel tiny_kernel
  .amdhsa_next_free_vgpr {vg}
  .amdhsa_next_free_sgpr 32
  .amdhsa_accum_offset {vg}
  .amdhsa_group_segment_fixed_size 0
  .amdhsa_kernarg_size 48
  .amdhsa_user_sgpr_count 2
  .amdhsa_user_sgpr_kernarg_segment_ptr 1
  .amdhsa_system_sgpr_workgroup_id_x 1
.end_amdhsa_kernel
"""
open(dst, "w").write(s.replace(m.group(0), k + "\n" + e) + body)
```

```python
import sys, re
src, dst, nrec, op, col = sys.argv[1], sys.argv[2], int(sys.argv[3]), sys.argv[4], int(sys.argv[5])
xcc = int(sys.argv[6]) if len(sys.argv) > 6 else -1
col2 = int(sys.argv[7]) if len(sys.argv) > 7 else None
role = sys.argv[8] if len(sys.argv) > 8 else "all"
s = open(src).read()
m = re.search(r"; @launch (grid=\S+ block=\S+ lds=\d+)", s)
k = "; @launch kernel=standalone__gqa_softmax__sampling_kernel " + m.group(1)
e = "; @launch kernel=stat_kernel grid=(1,1,1) block=(256,1,1) lds=256"
o = []
E = o.append
recs = nrec // 256
E(f""".text
.globl stat_kernel
.p2align 8
.type stat_kernel,@function
stat_kernel:
    s_cmp_ge_u32 s2, 1
    s_cbranch_scc1 S_end
    s_load_dwordx2 s[4:5], s[0:1], 40
    s_load_dwordx2 s[8:9], s[0:1], 32
    s_mov_b32 s6, 0x10000000
    s_mov_b32 s7, 0x20000
    s_mov_b32 s10, 256
    s_mov_b32 s11, 0x20000
    v_mov_b32 v3, 0
    v_mov_b32 v20, -1
    v_mov_b32 v21, -1
    v_mov_b32 v22, 0
    v_mov_b32 v23, 0
    ds_write_b128 v3, v[20:23]
    ds_write_b32 v3, v22 offset:16
    v_mul_u32_u24 v4, {recs*64}, v0
    v_add_u32 v4, 0x1000000, v4
    s_waitcnt lgkmcnt(0)
    s_barrier""")
for w in range(recs):
    E(f"    buffer_load_dword v{32+w}, v4, s[4:7], 0 offen offset:{w*64}")
    E(f"    buffer_load_dword v{64+w}, v4, s[4:7], 0 offen offset:{w*64+4*col}")
    E(f"    buffer_load_dword v{96+w}, v4, s[4:7], 0 offen offset:{w*64+60}")
    if col2 is not None: E(f"    buffer_load_dword v{112+w}, v4, s[4:7], 0 offen offset:{w*64+4*col2}")
E("    s_waitcnt vmcnt(0)")
for w in range(recs):
    E(f"    v_min_u32 v20, v20, v{32+w}")
E("    ds_min_u32 v3, v20\n    s_waitcnt lgkmcnt(0)\n    s_barrier\n    ds_read_b32 v6, v3\n    s_waitcnt lgkmcnt(0)")
E("    v_mov_b32 v24, 0")
for w in range(recs):
    if (role == "w" and w == recs - 1) or (role == "m" and w != recs - 1): continue
    E(f"    v_sub_u32 v5, v{64+w}, v{6 if col2 is None else 112+w}")
    E(f"    v_and_b32 v7, 15, v{96+w}")
    if xcc == -2:
        E(f"    v_cmp_gt_u32 vcc, 10000, v5")
    elif xcc >= 0:
        E(f"    v_cmp_eq_u32 vcc, {xcc}, v7")
    else:
        E(f"    v_cmp_eq_u32 vcc, v7, v7")
    E("    s_and_saveexec_b64 s[14:15], vcc")
    E("    v_min_u32 v21, v21, v5\n    v_max_u32 v22, v22, v5\n    v_add_u32 v23, v23, v5\n    v_add_u32 v24, 1, v24")
    E("    s_mov_b64 exec, s[14:15]")
E("""    ds_min_u32 v3, v21 offset:4
    ds_max_u32 v3, v22 offset:8
    ds_add_u32 v3, v23 offset:12
    ds_add_u32 v3, v24 offset:16
    s_waitcnt lgkmcnt(0)
    s_barrier
    ds_read_b128 v[8:11], v3
    ds_read_b32 v12, v3 offset:16
    s_waitcnt lgkmcnt(0)
    v_cvt_f32_u32 v13, v11
    v_cvt_f32_u32 v14, v12
    v_rcp_f32 v14, v14
    s_nop 1
    v_mul_f32 v13, v13, v14
    v_cvt_u32_f32 v11, v13
    s_nop 1
    v_readfirstlane_b32 s16, v6""")
if op == "none": E("    s_mov_b32 s17, 0")
else: E(f"    v_readfirstlane_b32 s17, v{ {'min':9,'max':10,'mean':11}[op] }")
import os
E(f"    s_nop 3\n    s_mul_i32 s17, s17, {os.environ.get('MUL', '1')}")
E("""    s_min_u32 s17, s17, 20000
    s_add_u32 s17, s17, 10000
    s_mov_b32 s20, 0
S_spin:
    s_memrealtime s[18:19]
    s_add_u32 s20, s20, 1
    s_cmp_gt_u32 s20, 100000
    s_cbranch_scc1 S_out
    s_waitcnt lgkmcnt(0)
    s_sub_u32 s18, s18, s16
    s_cmp_lt_u32 s18, s17
    s_cbranch_scc1 S_spin
S_out:
    s_waitcnt lgkmcnt(0)
    v_cmp_eq_u32 vcc, 0, v0
    s_and_saveexec_b64 s[14:15], vcc
    s_cbranch_execz S_end
    buffer_store_dwordx4 v[8:11], v3, s[8:11], 0 offen
S_end:
    s_endpgm
.section .rodata,"a"
.p2align 6
.amdhsa_kernel stat_kernel
  .amdhsa_next_free_vgpr 128
  .amdhsa_next_free_sgpr 32
  .amdhsa_accum_offset 128
  .amdhsa_group_segment_fixed_size 0
  .amdhsa_kernarg_size 48
  .amdhsa_user_sgpr_count 2
  .amdhsa_user_sgpr_kernarg_segment_ptr 1
  .amdhsa_system_sgpr_workgroup_id_x 1
.end_amdhsa_kernel
""")
import os
tiny = os.environ.get("TINY")
body = "\n".join(o)
if tiny:
    g, b, vg, lds = tiny.split(",")
    k = f"; @launch kernel=tiny_kernel grid=({g},1,1) block=({b},1,1) lds={lds}\n" + k
    body = body.replace("    v_readfirstlane_b32 s16, v6", "    s_load_dword s16, s[4:5], 0xfffc0\n    s_waitcnt lgkmcnt(0)")
    body += f""".text
.globl tiny_kernel
.p2align 8
.type tiny_kernel,@function
tiny_kernel:
    s_memrealtime s[12:13]
    s_cmp_ge_u32 s2, 1
    s_cbranch_scc1 Y_end
    s_load_dwordx2 s[4:5], s[0:1], 40
    s_mov_b32 s6, 0x10000000
    s_mov_b32 s7, 0x20000
    s_mov_b32 s3, 0xfffc0
    s_waitcnt lgkmcnt(0)
    v_mov_b32 v1, s12
    v_cmp_eq_u32 vcc, 0, v0
    s_and_saveexec_b64 s[14:15], vcc
    s_cbranch_execz Y_end
    buffer_store_dword v1, off, s[4:7], s3
Y_end:
    s_endpgm
.section .rodata,"a"
.p2align 6
.amdhsa_kernel tiny_kernel
  .amdhsa_next_free_vgpr {vg}
  .amdhsa_next_free_sgpr 32
  .amdhsa_accum_offset {vg}
  .amdhsa_group_segment_fixed_size 0
  .amdhsa_kernarg_size 48
  .amdhsa_user_sgpr_count 2
  .amdhsa_user_sgpr_kernarg_segment_ptr 1
  .amdhsa_system_sgpr_workgroup_id_x 1
.end_amdhsa_kernel
"""
open(dst, "w").write(s.replace(m.group(0), k + "\n" + e) + body)
```

```python
import sys, re
src, dst, nw, col, col2, shift, mask, op, role = sys.argv[1], sys.argv[2], int(sys.argv[3]), int(sys.argv[4]), int(sys.argv[5]), int(sys.argv[6]), int(sys.argv[7]), sys.argv[8], sys.argv[9]
s = open(src).read()
m = re.search(r"; @launch (grid=\S+ block=\S+ lds=\d+)", s)
k = "; @launch kernel=standalone__gqa_softmax__sampling_kernel " + m.group(1)
e = "; @launch kernel=stat_kernel grid=(1,1,1) block=(256,1,1) lds=256"
o = []
E = o.append
ws = [w for w in range(nw) if (role == "w") == (w != nw - 1)]
E(f""".text
.globl stat_kernel
.p2align 8
.type stat_kernel,@function
stat_kernel:
    s_cmp_ge_u32 s2, 1
    s_cbranch_scc1 S_end
    s_load_dwordx2 s[4:5], s[0:1], 40
    s_load_dwordx2 s[8:9], s[0:1], 32
    s_mov_b32 s6, 0x10000000
    s_mov_b32 s7, 0x20000
    s_mov_b32 s10, 64
    s_mov_b32 s11, 0x20000
    v_mov_b32 v3, 0
    v_and_b32 v1, 15, v0
    v_lshlrev_b32 v1, 2, v1
    ds_write_b32 v1, v3
    v_mul_u32_u24 v4, {nw*64}, v0
    v_add_u32 v4, 0x1000000, v4
    v_lshrrev_b32 v2, {shift}, v0
    v_and_b32 v2, {mask}, v2
    v_lshlrev_b32 v2, 2, v2
    s_waitcnt lgkmcnt(0)
    s_barrier""")
for w in ws:
    E(f"    buffer_load_dword v{32+w}, v4, s[4:7], 0 offen offset:{w*64+4*col}")
    E(f"    buffer_load_dword v{64+w}, v4, s[4:7], 0 offen offset:{w*64+4*col2}")
E("    s_waitcnt vmcnt(0)")
for w in ws:
    E(f"    v_sub_u32 v5, v{32+w}, v{64+w}")
    E(f"    v_add_u32 v3, v3, v5" if op == "mean" else f"    v_max_u32 v3, v3, v5")
E(f"    ds_add_u32 v2, v3" if op == "mean" else "    ds_max_u32 v2, v3")
n = len(ws) * 256 // (mask + 1)
E(f"""    s_waitcnt lgkmcnt(0)
    s_barrier
    ds_read_b32 v6, v1
    s_waitcnt lgkmcnt(0)""")
if op == "mean":
    E(f"    v_cvt_f32_u32 v6, v6\n    v_mul_f32 v6, {1.0/n!r}, v6\n    v_cvt_u32_f32 v6, v6")
E("""    v_lshlrev_b32 v7, 2, v0
    buffer_store_dword v6, v7, s[8:11], 0 offen
S_end:
    s_endpgm
.section .rodata,"a"
.p2align 6
.amdhsa_kernel stat_kernel
  .amdhsa_next_free_vgpr 128
  .amdhsa_next_free_sgpr 32
  .amdhsa_accum_offset 128
  .amdhsa_group_segment_fixed_size 0
  .amdhsa_kernarg_size 48
  .amdhsa_user_sgpr_count 2
  .amdhsa_user_sgpr_kernarg_segment_ptr 1
  .amdhsa_system_sgpr_workgroup_id_x 1
.end_amdhsa_kernel
""")
open(dst, "w").write(s.replace(m.group(0), k + "\n" + e) + "\n".join(o))
```

```python
import sys, re
src, dst, nrec, op, col = sys.argv[1], sys.argv[2], int(sys.argv[3]), sys.argv[4], int(sys.argv[5])
xcc = int(sys.argv[6]) if len(sys.argv) > 6 else -1
col2 = int(sys.argv[7]) if len(sys.argv) > 7 else None
role = sys.argv[8] if len(sys.argv) > 8 else "all"
s = open(src).read()
m = re.search(r"; @launch (grid=\S+ block=\S+ lds=\d+)", s)
k = "; @launch kernel=standalone__gqa_softmax__sampling_kernel " + m.group(1)
e = "; @launch kernel=stat_kernel grid=(1,1,1) block=(256,1,1) lds=256"
o = []
E = o.append
recs = nrec // 256
E(f""".text
.globl stat_kernel
.p2align 8
.type stat_kernel,@function
stat_kernel:
    s_cmp_ge_u32 s2, 1
    s_cbranch_scc1 S_end
    s_load_dwordx2 s[4:5], s[0:1], 40
    s_load_dwordx2 s[8:9], s[0:1], 32
    s_mov_b32 s6, 0x10000000
    s_mov_b32 s7, 0x20000
    s_mov_b32 s10, 256
    s_mov_b32 s11, 0x20000
    v_mov_b32 v3, 0
    v_mov_b32 v20, -1
    v_mov_b32 v21, -1
    v_mov_b32 v22, 0
    v_mov_b32 v23, 0
    ds_write_b128 v3, v[20:23]
    ds_write_b32 v3, v22 offset:16
    v_mul_u32_u24 v4, {recs*64}, v0
    v_add_u32 v4, 0x1000000, v4
    s_waitcnt lgkmcnt(0)
    s_barrier""")
for w in range(recs):
    E(f"    buffer_load_dword v{32+w}, v4, s[4:7], 0 offen offset:{w*64}")
    E(f"    buffer_load_dword v{64+w}, v4, s[4:7], 0 offen offset:{w*64+4*col}")
    E(f"    buffer_load_dword v{96+w}, v4, s[4:7], 0 offen offset:{w*64+60}")
    if col2 is not None: E(f"    buffer_load_dword v{112+w}, v4, s[4:7], 0 offen offset:{w*64+4*col2}")
E("    s_waitcnt vmcnt(0)")
for w in range(recs):
    E(f"    v_min_u32 v20, v20, v{32+w}")
E("    ds_min_u32 v3, v20\n    s_waitcnt lgkmcnt(0)\n    s_barrier\n    ds_read_b32 v6, v3\n    s_waitcnt lgkmcnt(0)")
E("    v_mov_b32 v24, 0")
for w in range(recs):
    if (role == "w" and w == recs - 1) or (role == "m" and w != recs - 1): continue
    if op == "sum": E(f"    v_mov_b32 v5, v{64+w}")
    else: E(f"    v_sub_u32 v5, v{64+w}, v{6 if col2 is None else 112+w}")
    E(f"    v_and_b32 v7, 15, v{96+w}")
    if xcc == -2:
        E(f"    v_cmp_gt_u32 vcc, 10000, v5")
    elif xcc >= 0:
        E(f"    v_cmp_eq_u32 vcc, {xcc}, v7")
    else:
        E(f"    v_cmp_eq_u32 vcc, v7, v7")
    E("    s_and_saveexec_b64 s[14:15], vcc")
    E("    v_min_u32 v21, v21, v5\n    v_max_u32 v22, v22, v5\n    v_add_u32 v23, v23, v5\n    v_add_u32 v24, 1, v24")
    E("    s_mov_b64 exec, s[14:15]")
E("""    ds_min_u32 v3, v21 offset:4
    ds_max_u32 v3, v22 offset:8
    ds_add_u32 v3, v23 offset:12
    ds_add_u32 v3, v24 offset:16
    s_waitcnt lgkmcnt(0)
    s_barrier
    ds_read_b128 v[8:11], v3
    ds_read_b32 v12, v3 offset:16
    s_waitcnt lgkmcnt(0)
    v_mov_b32 v15, v11
    v_cvt_f32_u32 v13, v11
    v_cvt_f32_u32 v14, v12
    v_rcp_f32 v14, v14
    s_nop 1
    v_mul_f32 v13, v13, v14
    v_cvt_u32_f32 v11, v13
    s_nop 1
    v_readfirstlane_b32 s16, v6""")
if op == "none": E("    s_mov_b32 s17, 0")
else: E(f"    v_readfirstlane_b32 s17, v{ {'min':9,'max':10,'mean':11,'sum':15}[op] }")
import os
E(f"    s_nop 3\n    s_mul_i32 s17, s17, {os.environ.get('MUL', '1')}")
E("""    s_min_u32 s17, s17, 20000
    s_add_u32 s17, s17, 10000
    s_mov_b32 s20, 0
S_spin:
    s_memrealtime s[18:19]
    s_add_u32 s20, s20, 1
    s_cmp_gt_u32 s20, 100000
    s_cbranch_scc1 S_out
    s_waitcnt lgkmcnt(0)
    s_sub_u32 s18, s18, s16
    s_cmp_lt_u32 s18, s17
    s_cbranch_scc1 S_spin
S_out:
    s_waitcnt lgkmcnt(0)
    v_cmp_eq_u32 vcc, 0, v0
    s_and_saveexec_b64 s[14:15], vcc
    s_cbranch_execz S_end
    buffer_store_dwordx4 v[8:11], v3, s[8:11], 0 offen
S_end:
    s_endpgm
.section .rodata,"a"
.p2align 6
.amdhsa_kernel stat_kernel
  .amdhsa_next_free_vgpr 128
  .amdhsa_next_free_sgpr 32
  .amdhsa_accum_offset 128
  .amdhsa_group_segment_fixed_size 0
  .amdhsa_kernarg_size 48
  .amdhsa_user_sgpr_count 2
  .amdhsa_user_sgpr_kernarg_segment_ptr 1
  .amdhsa_system_sgpr_workgroup_id_x 1
.end_amdhsa_kernel
""")
import os
tiny = os.environ.get("TINY")
body = "\n".join(o)
if tiny:
    g, b, vg, lds = tiny.split(",")
    k = f"; @launch kernel=tiny_kernel grid=({g},1,1) block=({b},1,1) lds={lds}\n" + k
    body = body.replace("    v_readfirstlane_b32 s16, v6", "    s_load_dword s16, s[4:5], 0xfffc0\n    s_waitcnt lgkmcnt(0)")
    body += f""".text
.globl tiny_kernel
.p2align 8
.type tiny_kernel,@function
tiny_kernel:
    s_memrealtime s[12:13]
    s_cmp_ge_u32 s2, 1
    s_cbranch_scc1 Y_end
    s_load_dwordx2 s[4:5], s[0:1], 40
    s_mov_b32 s6, 0x10000000
    s_mov_b32 s7, 0x20000
    s_mov_b32 s3, 0xfffc0
    s_waitcnt lgkmcnt(0)
    v_mov_b32 v1, s12
    v_cmp_eq_u32 vcc, 0, v0
    s_and_saveexec_b64 s[14:15], vcc
    s_cbranch_execz Y_end
    buffer_store_dword v1, off, s[4:7], s3
Y_end:
    s_endpgm
.section .rodata,"a"
.p2align 6
.amdhsa_kernel tiny_kernel
  .amdhsa_next_free_vgpr {vg}
  .amdhsa_next_free_sgpr 32
  .amdhsa_accum_offset {vg}
  .amdhsa_group_segment_fixed_size 0
  .amdhsa_kernarg_size 48
  .amdhsa_user_sgpr_count 2
  .amdhsa_user_sgpr_kernarg_segment_ptr 1
  .amdhsa_system_sgpr_workgroup_id_x 1
.end_amdhsa_kernel
"""
open(dst, "w").write(s.replace(m.group(0), k + "\n" + e) + body)
```
